```python
import torch

def _softmax(x, axis=-1):
    return torch.softmax(x, dim=axis)

def _gelu(x):
    return torch.nn.functional.gelu(x, approximate='tanh')

def _silu(x):
    return torch.nn.functional.silu(x)

def _sigmoid(x):
    return torch.sigmoid(x)

def _layernorm(x, axis=-1, eps=1e-05):
    m = x.mean(dim=axis, keepdim=True)
    v = x.var(dim=axis, keepdim=True, unbiased=False)
    return (x - m) / torch.sqrt(v + eps)

def _scatter_add(tgt, idx, src, axis=0):
    return tgt.clone().index_add_(axis, idx, src)

def _segment_sum(src, seg, n):
    out = torch.zeros((n,) + src.shape[1:], dtype=src.dtype)
    return out.index_add_(0, seg, src)

def _pad(x, pw):
    flat = tuple((v for pair in reversed(pw) for v in pair))
    return torch.nn.functional.pad(x, flat)
kernel_name = 'adaLN_cond__sliding_local_dilated__dense_activation_relu__prompt'

def setup_inputs():

    _w = lambda a: (lambda t: t.to(torch.bfloat16) if t.is_floating_point() else t)(torch.as_tensor(a))

    def _A_setup():
        B, S, D = (1, 2048, 576)
        return {'x': _w((lambda *s: torch.randn(*s, dtype=torch.bfloat16) * 0.05)(B, S, D)), 'wqkv': _w((lambda *s: torch.randn(*s, dtype=torch.bfloat16) * 0.05)(D, 3 * D)), 'wo': _w((lambda *s: torch.randn(*s, dtype=torch.bfloat16) * 0.05)(D, D))}
    _A_in = _A_setup()

    def _B_setup():
        B, S, D, Dff = (1, 2048, 576, 4608)
        return {'x': _w((lambda *s: torch.randn(*s, dtype=torch.bfloat16) * 0.05)(B, S, D)), 'w1': _w((lambda *s: torch.randn(*s, dtype=torch.bfloat16) * 0.05)(D, Dff)), 'w2': _w((lambda *s: torch.randn(*s, dtype=torch.bfloat16) * 0.05)(Dff, D))}
    _B_in = _B_setup()
    return {'A_x': _A_in['x'], 'A_wqkv': _A_in['wqkv'], 'A_wo': _A_in['wo'], 'B_x': _B_in['x'], 'B_w1': _B_in['w1'], 'B_w2': _B_in['w2'], 'c': _w((lambda *s: torch.randn(*s, dtype=torch.bfloat16) * 0.1)(1, 576) * 8.0), 'w_mod': _w((lambda *s: torch.randn(*s, dtype=torch.bfloat16) * 0.1)(576, 6 * 576) * 576 ** (-0.5) * 8.0)}

def reference(A_x, A_wqkv, A_wo, B_x, B_w1, B_w2, c, w_mod):

    def _A_ref(x, wqkv, wo):
        B, S, D = x.shape
        H = 32
        Dh = D // H
        W, dil = (8, 2)
        qkv = (lambda x, *d: x.permute(*d))((x @ wqkv).reshape(B, S, 3, H, Dh), 2, 0, 3, 1, 4)
        q, k, v = (qkv[0], qkv[1], qkv[2])
        scale = Dh ** (-0.5)
        pos = torch.arange(S)
        off = torch.arange(W) * dil
        idx = pos[:, None] - off[None, :]
        mask = idx >= 0
        idx_c = torch.where(mask, idx, 0).reshape(-1)
        kg = k[:, :, idx_c, :].reshape(B, H, S, W, Dh)
        vg = v[:, :, idx_c, :].reshape(B, H, S, W, Dh)
        logits = torch.einsum('bhsd,bhswd->bhsw', q, kg) * scale
        logits = torch.where(mask[None, None, :, :], logits, -1000000000.0)
        attn = _softmax(logits, axis=-1)
        o = torch.einsum('bhsw,bhswd->bhsd', attn, vg)
        return (lambda x, *d: x.permute(*d))(o, 0, 2, 1, 3).reshape(B, S, D) @ wo

    def _B_ref(x, w1, w2):
        h = torch.einsum('bsd,df->bsf', x, w1)
        zero = torch.zeros_like(h)
        h = torch.maximum(h, zero)
        return torch.einsum('bsf,fd->bsd', h, w2)
    x = A_x
    mod = (_silu(c) @ w_mod).reshape(c.shape[0], 6, 1, -1)
    sa, ca, ga, sb, cb, gb = (mod[:, 0].clone(), mod[:, 1].clone(), mod[:, 2].clone(), mod[:, 3].clone(), mod[:, 4].clone(), mod[:, 5].clone())
    h = _layernorm(x, axis=-1) * (1 + ca) + sa
    x = x + ga * _A_ref(h, A_wqkv, A_wo)
    h = _layernorm(x, axis=-1) * (1 + cb) + sb
    x = x + gb * _B_ref(h, B_w1, B_w2)
    return x
```

```python
import re
REG = re.compile(r'^-?\|?(?:abs\()?([vas])(?:(\d+)|\[(\d+):(\d+)\])\)?\|?$')
def regs(tok):
    tok = tok.strip()
    if tok in ('vcc', 'exec', 'm0'): return {tok}
    if tok in ('vcc_lo', 'vcc_hi'): return {'vcc'}
    if tok in ('exec_lo', 'exec_hi'): return {'exec'}
    m = REG.match(tok)
    if not m: return set()
    k = m.group(1)
    if m.group(2) is not None: return {k + m.group(2)}
    return {k + str(i) for i in range(int(m.group(3)), int(m.group(4)) + 1)}
TRANS = ('v_exp_f32', 'v_log_f32', 'v_rcp_f32', 'v_rsq_f32', 'v_sqrt_f32')
class I:
    def __init__(s, text, tag=None):
        s.text = text; s.tag = tag
        t = text.split(';')[0].strip()
        s.label = t.endswith(':'); s.directive = t.startswith('.')
        sp = t.split(None, 1); s.op = sp[0]; rest = sp[1] if len(sp) > 1 else ''
        ops = [o.strip() for o in re.split(r',(?![^\[]*\])', rest)] if rest else []
        s.mods = ''
        if ops:
            last = ops[-1].split(None, 1)
            ops[-1] = last[0]; s.mods = last[1] if len(last) > 1 else ''
        s.ops = ops; op = s.op
        R = [regs(o) for o in ops]
        U = lambda l: set().union(*l) if l else set()
        s.mfma = op.startswith('v_mfma'); s.valu = op.startswith('v_') and not s.mfma
        s.vmem = op.startswith(('buffer_', 'global_')); s.ds = op.startswith('ds_')
        s.smem = op.startswith(('s_load', 's_memtime', 's_memrealtime', 's_buffer_load'))
        s.salu = op.startswith('s_') and not s.smem
        s.dma = s.vmem and re.search(r'\blds\b', s.mods) is not None
        s.store = s.vmem and ('_store' in op or '_atomic' in op)
        s.trans = op.startswith(TRANS)
        s.dpp = s.valu and re.search(r'row_|quad_perm|wave_', s.mods) is not None
        s.perm = op.startswith('v_permlane')
        s.d = set(); s.u = set(); s.c = set(); s.ab = set()
        if s.label or s.directive: return
        if s.mfma: s.d = R[0]; s.c = R[3]; s.ab = R[1] | R[2]; s.u = s.ab | s.c
        elif s.perm: s.d = U(R); s.u = U(R)
        elif s.valu:
            nd = 2 if re.match(r'v_(add|sub|addc|subb)_co', op) else 1
            s.d = U(R[:nd]); s.u = U(R[nd:])
            if re.match(r'v_(fmac|dot2c|pk_fmac|writelane)', op) or s.dpp: s.u |= R[0]
            if op.startswith('v_cmpx'): s.d |= {'exec'}
        elif s.vmem:
            if op.startswith(('buffer_wbl2', 'buffer_inv')): pass
            elif s.dma: s.u = U(R) | {'m0'}
            elif s.store:
                s.u = U(R)
                if '_atomic' in op and 'sc0' in s.mods: s.d = R[0]
            else: s.d = R[0]; s.u = U(R[1:])
        elif s.ds:
            if op.startswith('ds_write'): s.u = U(R)
            else: s.d = R[0]; s.u = U(R[1:])
        elif s.smem: s.d = R[0]; s.u = U(R[1:])
        elif s.salu:
            if re.match(r's_(cmp|waitcnt|barrier|cbranch|branch|nop|endpgm|setprio|sleep|bitcmp)', op): s.u = U(R)
            else:
                s.d = R[0]; s.u = U(R[1:])
                if 'saveexec' in op: s.d |= {'exec'}; s.u |= {'exec'}
                if re.match(r's_(addk|mulk)', op): s.u |= R[0]
        s.wide = s.store and re.search(r'x[34]$', op) is not None
        if s.wide: s.data = R[0] if op.startswith('buffer') else R[1]
    def states(s):
        if s.label or s.directive: return 0
        if s.op == 's_nop': return int(s.ops[0]) + 1
        return 1
def need(p, c):
    n = 0
    isv = lambda x: {r for r in x if r[0] in 'va' and r not in ('vcc',)}
    iss = lambda x: {r for r in x if r[0] == 's' or r == 'vcc'}
    if p.valu:
        pv = isv(p.d); ps = iss(p.d)
        if c.mfma and pv & c.u: n = max(n, 2)
        if (c.perm or c.dpp) and pv & c.u: n = max(n, 2)
        if c.op.startswith(('v_readfirstlane', 'v_readlane')) and pv & c.u: n = max(n, 1)
        if p.trans and (c.valu or c.mfma) and pv & c.u: n = max(n, 1)
        if ps & c.u:
            if c.vmem: n = max(n, 5)
            if c.valu: n = max(n, 4 if c.op.startswith(('v_readlane', 'v_writelane')) else 2)
            if c.salu or c.smem: n = max(n, 1)
        if 'op_sel' in p.mods and not p.op.startswith('v_pk') and c.valu and pv & (c.u | c.d): n = max(n, 1)
        if p.op.startswith('v_dot') and pv & (c.u | c.d) and (c.valu or c.mfma or c.vmem or c.ds):
            if not (c.op == p.op and not (pv & (regs(c.ops[1]) | regs(c.ops[2])))): n = max(n, 3)
        if 'exec' in p.d: n = max(n, 5 if (c.valu or c.mfma) else 0)
    if p.mfma:
        big = '32x32' in p.op
        if c.mfma:
            if p.d & c.ab: n = max(n, 12 if big else 8)
            if p.d & c.c and p.d != c.c: n = max(n, 10 if big else 6)
            if p.d & c.d and p.d != c.c: n = max(n, 10 if big else 6)
        elif (c.valu or c.vmem or c.ds) and p.d & (c.u | c.d): n = max(n, 12 if big else 8)
        if c.valu and p.c & c.d: n = max(n, 7 if big else 3)
    if p.salu and 'm0' in p.d and c.dma: n = max(n, 1)
    if p.vmem and getattr(p, 'wide', False) and p.data & c.d: n = max(n, 2)
    return n
class K:
    def __init__(s): s.L = []
    def __call__(s, text, tag=None):
        for ln in text.split('\n'):
            ln = ln.strip()
            if ln: s.L.append(I(ln, tag))
    def waitvm(s, tag): s.L.append(('waitvm', tag))
    def waitlgkm(s, tag): s.L.append(('waitlgkm', tag))
    def fin(s):
        out = []; vq = []; lq = []
        def wait(vn, ln):
            nonlocal vq, lq
            t = []
            if vn is not None: vn = min(vn, 62); t.append(f'vmcnt({vn})'); vq = vq[len(vq) - vn:] if vn else []
            if ln is not None:
                if any(x.smem for x in lq): ln = 0
                ln = min(ln, 14); t.append(f'lgkmcnt({ln})'); lq = lq[len(lq) - ln:] if ln else []
            if t: out.append(I('s_waitcnt ' + ' '.join(t)))
        def after(q, pred):
            idx = [i for i, x in enumerate(q) if pred(x)]
            return None if not idx else len(q) - 1 - idx[-1]
        for x in s.L:
            if isinstance(x, tuple):
                if x[0] == 'waitvm': wait(after(vq, lambda y: y.tag == x[1]), None)
                else: wait(None, after(lq, lambda y: y.tag == x[1]))
                continue
            if x.op == 's_waitcnt':
                m = re.search(r'vmcnt\((\d+)\)', x.text)
                if m: n = int(m.group(1)); vq = vq[max(0, len(vq) - n):] if n else []
                m = re.search(r'lgkmcnt\((\d+)\)', x.text)
                if m: n = int(m.group(1)); lq = lq[max(0, len(lq) - n):] if n else []
                out.append(x); continue
            touch = x.u | x.d
            wait(after(vq, lambda y: y.d & touch), after(lq, lambda y: y.d & touch))
            dist = 0; pad = 0
            for p in reversed(out):
                if dist >= 12: break
                if not (p.label or p.directive): pad = max(pad, need(p, x) - dist)
                dist += p.states()
            if pad > 0: out.append(I(f's_nop {pad - 1}'))
            out.append(x)
            if x.vmem: vq.append(x)
            if x.ds or x.smem: lq.append(x)
            assert len(vq) <= 63, ('vmcnt overflow', x.text)
        return '\n'.join(('' if (i.label or i.directive) else '  ') + i.text for i in out) + '\n'
def interleave(main, fill, start=0, per=1):
    out = []; j = 0
    for i, m in enumerate(main):
        out.append(m)
        if i >= start:
            for _ in range(per):
                if j < len(fill): out.append(fill[j]); j += 1
    out += fill[j:]
    return out
def kd(name, vgpr, accum, sgpr=102):
    return f""".p2align 6
.amdhsa_kernel {name}
  .amdhsa_next_free_vgpr {vgpr}
  .amdhsa_next_free_sgpr {sgpr}
  .amdhsa_accum_offset {accum}
  .amdhsa_group_segment_fixed_size 0
  .amdhsa_kernarg_size 88
  .amdhsa_user_sgpr_count 2
  .amdhsa_user_sgpr_kernarg_segment_ptr 1
  .amdhsa_system_sgpr_workgroup_id_x 1
.end_amdhsa_kernel
"""
```

```python
import sys
from asmgen import K, kd, interleave
NAME = "adaLN_cond__sliding_local_dilated__dense_activation_relu__prompt"
ACT = 2359296
MOD = 0; XH = 0x10000; WQ = XH + ACT; WO = WQ + 8*15*18*1024; OO = WO + 8*90*1024; X2 = OO + ACT; PART = X2 + ACT
WSEND = PART + 8*ACT
STAMP = 0x4000000
OPT = dict(stamp=0, k1map=4, k2map=8, k3map=2, pst="sc0 sc1", wld="", pf=1)
P_X, P_WQKV, P_WO, P_BX, P_W1, P_W2, P_C, P_WMOD, P_OUT, P_DBG, P_WS = [8*i for i in range(11)]
def v(a, n=1): return f"v{a}" if n == 1 else f"v[{a}:{a+n-1}]"
def a_(a, n=1): return f"a{a}" if n == 1 else f"a[{a}:{a+n-1}]"
def s(a, n=1): return f"s{a}" if n == 1 else f"s[{a}:{a+n-1}]"
def head(e, name, nwg):
    e(f".globl {name}\n.p2align 8\n.type {name},@function\n{name}:")
    e(f"s_cmp_ge_u32 s2, {nwg}\ns_cbranch_scc1 L_end_{name}")
def srd(e, d, karg, nbytes):
    e(f"s_load_dwordx2 {s(d,2)}, s[0:1], {karg}\ns_mov_b32 {s(d+2)}, {nbytes}\ns_mov_b32 {s(d+3)}, 0x20000")
def stamp(e, kid, i, ws=None):
    if not OPT['stamp']: return
    e(f"s_memrealtime s[{80+2*i}:{81+2*i}]")
def stamp_out(e, kid, n, ws):
    if not OPT['stamp']: return
    e("s_waitcnt vmcnt(0) lgkmcnt(0)")
    e(f"s_memrealtime s[{80+2*n}:{81+2*n}]\ns_waitcnt lgkmcnt(0)")
    e(f"s_mov_b32 {s(ws+2)}, 0x10000000\ns_lshl_b32 s78, s2, 6\ns_add_u32 s78, s78, {STAMP + kid*65536}\ns_mov_b64 exec, 1\nv_mov_b32 v1, 0")
    for i in range(n+1): e(f"v_mov_b32 v2, s{80+2*i}\nbuffer_store_dword v2, v1, {s(ws,4)}, s78 offen offset:{4*i}")
def wgmap(e, nsl, rb, sl):
    lg = nsl.bit_length() - 1; nx = 8 // nsl; lx = nx.bit_length() - 1
    e(f"s_and_b32 s70, s2, 7\ns_lshr_b32 s71, s2, 3")
    e(f"s_and_b32 s72, s70, {nx-1}\ns_lshl_b32 s72, s72, {lg}\ns_and_b32 s73, s71, {nsl-1}\ns_add_u32 {s(sl)}, s72, s73")
    e(f"s_lshr_b32 s72, s70, {lx}\ns_lshl_b32 s72, s72, {5-lg}\ns_lshr_b32 s73, s71, {lg}\ns_add_u32 {s(rb)}, s72, s73")
def waveid(e, d): e(f"v_lshrrev_b32 v1, 6, v0\nv_readfirstlane_b32 {s(d)}, v1\nv_and_b32 v0, 63, v0")

NG, NL, NR = 224, 64, 144
def k0():
    name = "k0_kernel"; out = ""
    e = K(); head(e, name, NG+NL+NR); stamp(e, 0, 0)
    srd(e, 12, P_WS, WSEND)
    e(f"s_cmp_ge_u32 s2, {NG+NL}\ns_cbranch_scc1 L_relay\ns_cmp_ge_u32 s2, {NG}\ns_cbranch_scc1 L_ln")
    srd(e, 4, P_C, 1152); srd(e, 8, P_WMOD, 576*6912)
    e("s_and_b32 s20, s2, 7\ns_lshr_b32 s21, s2, 3\ns_mul_i32 s20, s20, 7\ns_lshr_b32 s22, s21, 2\ns_add_u32 s20, s20, s22")
    e(f"s_cmp_ge_u32 s20, 54\ns_cbranch_scc1 L_end_{name}")
    e("s_and_b32 s21, s21, 3\ns_lshl_b32 s20, s20, 2\ns_add_u32 s20, s20, s21")
    e("s_lshl_b32 s23, s20, 5")
    e("v_lshrrev_b32 v1, 1, v0\nv_and_b32 v2, 1, v0\nv_lshlrev_b32 v2, 4, v2\nv_mul_u32_u24 v3, 6912, v1\nv_add_u32 v3, v3, v2\nv_lshlrev_b32 v4, 1, v1")
    for i in range(5): e(f"buffer_load_ushort {v(10+i)}, v4, s[4:7], 0 offen offset:{256*i}")
    for i in range(5):
        e(f"buffer_load_dwordx4 {v(16+4*i,4)}, v3, s[8:11], s23 offen {OPT['wld']}")
        if i < 4: e(f"s_add_u32 s23, s23, {128*6912}")
    for i in range(5): e(f"v_lshlrev_b32 {v(10+i)}, 16, {v(10+i)}\nv_mul_f32 {v(40+i)}, 0xbfb8aa3b, {v(10+i)}")
    for i in range(5): e(f"v_exp_f32 {v(40+i)}, {v(40+i)}")
    for i in range(5): e(f"v_add_f32 {v(40+i)}, 1.0, {v(40+i)}")
    for i in range(5): e(f"v_rcp_f32 {v(40+i)}, {v(40+i)}")
    for i in range(5): e(f"v_mul_f32 {v(10+i)}, {v(10+i)}, {v(40+i)}")
    for i in range(5): e(f"v_cvt_pk_bf16_f32 {v(10+i)}, {v(10+i)}, {v(10+i)}")
    for i in range(5): e(f"v_lshlrev_b32 {v(10+i)}, 16, {v(10+i)}")
    for i in range(5):
        for d in range(4):
            e(f"v_lshlrev_b32 v46, 16, {v(16+4*i+d)}\nv_and_b32 v47, 0xffff0000, {v(16+4*i+d)}")
            op = "v_mul_f32" if i == 0 else "v_fmac_f32"
            e(f"{op} {v(48+2*d)}, v46, {v(10+i)}\n{op} {v(49+2*d)}, v47, {v(10+i)}")
    for r in (2, 4, 8):
        for d in range(8): e(f"v_add_f32 {v(48+d)}, {v(48+d)}, {v(48+d)} row_ror:{r}")
    e("v_lshrrev_b32 v5, 4, v0\nv_lshlrev_b32 v5, 6, v5\nv_lshl_add_u32 v5, v2, 1, v5\nv_and_b32 v6, 15, v0\nv_cmp_gt_u32 vcc, 2, v6\ns_and_saveexec_b64 s[24:25], vcc")
    e("ds_write_b128 v5, v[48:51]\nds_write_b128 v5, v[52:55] offset:16\ns_mov_b64 exec, s[24:25]\ns_waitcnt lgkmcnt(0)\ns_barrier")
    e(f"v_cmp_gt_u32 vcc, 16, v0\ns_and_saveexec_b64 s[24:25], vcc\ns_cbranch_execz L_end_{name}")
    e("v_lshlrev_b32 v5, 2, v0")
    for p in range(16): e(f"ds_read_b32 {v(16+p)}, v5 offset:{64*p}")
    for st in (8, 4, 2, 1):
        for p in range(st): e(f"v_add_f32 {v(16+p)}, {v(16+p)}, {v(16+p+st)}")
    e("v_cvt_pk_bf16_f32 v16, v16, v16\nv_lshlrev_b32 v16, 16, v16\nv_add_f32 v17, 1.0, v16\nv_cvt_pk_bf16_f32 v17, v17, v17\nv_lshlrev_b32 v17, 16, v17")
    e("s_mul_i32 s21, s20, 1821\ns_lshr_b32 s21, s21, 16\ns_cmp_eq_u32 s21, 1\ns_cselect_b64 s[26:27], -1, 0\ns_cmp_eq_u32 s21, 4\ns_cselect_b64 s[26:27], -1, s[26:27]")
    e(f"v_cndmask_b32 v16, v16, v17, s[26:27]\ns_lshl_b32 s20, s20, 6\nbuffer_store_dword v16, v5, s[12:15], s20 offen")
    stamp_out(e, 0, 1, 12)
    e("s_endpgm"); out += e.fin()
    e = K(); e("L_ln:"); srd(e, 4, P_X, ACT)
    e(f"s_sub_u32 s20, s2, {NG}\nv_lshrrev_b32 v1, 3, v0\nv_and_b32 v2, 7, v0\ns_mul_i32 s21, s20, {32*1152}")
    e("v_mul_u32_u24 v3, 1152, v1\nv_lshl_add_u32 v3, v2, 4, v3\ns_waitcnt lgkmcnt(0)")
    for i in range(9): e(f"buffer_load_dwordx4 {v(8+4*i,4)}, v3, s[4:7], s21 offen offset:{128*i}")
    e(f"v_lshrrev_b32 v4, 4, v1\nv_mul_u32_u24 v4, 18432, v4\nv_and_b32 v5, 15, v1\nv_lshl_add_u32 v4, v5, 4, v4\nv_lshl_add_u32 v4, v2, 8, v4\ns_add_u32 s22, s21, {XH}")
    for i in range(36): e(f"v_lshlrev_b32 {v(48+2*i)}, 16, {v(8+i)}\nv_and_b32 {v(49+2*i)}, 0xffff0000, {v(8+i)}")
    e("v_pk_add_f32 v[6:7], v[48:49], v[50:51]\nv_pk_add_f32 v[44:45], v[52:53], v[54:55]")
    for i in range(4, 36): e(f"v_pk_add_f32 {v((6,44)[i&1],2)}, {v((6,44)[i&1],2)}, {v(48+2*i,2)}")
    def red8(): e("v_pk_add_f32 v[6:7], v[6:7], v[44:45]\nv_add_f32 v6, v6, v7\nv_add_f32 v6, v6, v6 quad_perm:[1,0,3,2]\nv_add_f32 v6, v6, v6 quad_perm:[2,3,0,1]\nv_add_f32 v6, v6, v6 row_half_mirror")
    red8(); e("v_mul_f32 v46, 0xbae38e39, v6")
    for i in range(36): e(f"v_pk_add_f32 {v(48+2*i,2)}, {v(48+2*i,2)}, v[46:47] op_sel_hi:[1,0]")
    e("v_pk_mul_f32 v[6:7], v[48:49], v[48:49]\nv_pk_mul_f32 v[44:45], v[50:51], v[50:51]")
    for i in range(2, 36): e(f"v_pk_fma_f32 {v((6,44)[i&1],2)}, {v(48+2*i,2)}, {v(48+2*i,2)}, {v((6,44)[i&1],2)}")
    red8(); e("v_mov_b32 v7, 0x3727c5ac\nv_fmac_f32 v7, 0x3ae38e39, v6\nv_rsq_f32 v46, v7")
    for i in range(36):
        e(f"v_pk_mul_f32 {v(48+2*i,2)}, {v(48+2*i,2)}, v[46:47] op_sel_hi:[1,0]\nv_cvt_pk_f16_f32 {v(8+i)}, {v(48+2*i)}, {v(49+2*i)}")
        if i % 4 == 3:
            e(f"buffer_store_dwordx4 {v(8+i-3,4)}, v4, s[12:15], s22 offen offset:{2048*((i//4)&1)}")
            if (i//4) & 1: e("s_add_u32 s22, s22, 4096")
    stamp_out(e, 0, 1, 12)
    e("s_endpgm"); out += e.fin()
    e = K(); e("L_relay:"); srd(e, 4, P_WQKV, 576*3456); srd(e, 8, P_WO, 576*1152)
    waveid(e, 20)
    e(f"s_sub_u32 s21, s2, {NG+NL}\ns_and_b32 s22, s21, 7\ns_lshr_b32 s23, s21, 3")
    e("v_and_b32 v1, 15, v0\nv_lshrrev_b32 v2, 4, v0\nv_lshlrev_b32 v8, 4, v0\ns_waitcnt lgkmcnt(0)")
    e("s_cmp_eq_u32 s20, 3\ns_cselect_b32 s4, s8, s4\ns_cselect_b32 s5, s9, s5\ns_cselect_b32 s6, s10, s6\ns_cselect_b64 s[30:31], -1, 0")
    e("s_mov_b32 s24, 3456\ns_cselect_b32 s24, 1152, s24\ns_cselect_b32 s25, 0, s20")
    e("s_mul_i32 s25, s25, 1152\ns_mul_i32 s26, s22, 144\ns_add_u32 s25, s25, s26\ns_lshl_b32 s26, s23, 5\ns_mul_i32 s26, s26, s24\ns_add_u32 s25, s25, s26")
    e("s_lshl_b32 s26, s24, 3\nv_mul_lo_u32 v2, v2, s26")
    for t in range(5):
        e(f"v_add_u32 v9, {16*t}, v1\nv_mul_u32_u24 v10, 205, v9\nv_lshrrev_b32 v10, 12, v10\nv_mul_u32_u24 v11, 20, v10\nv_sub_u32 v11, v9, v11")
        e("v_cmp_gt_u32 s[32:33], 18, v11\nv_cmp_gt_u32 vcc, 72, v9\nv_lshlrev_b32 v10, 1, v10\nv_sub_u32 v10, v9, v10\nv_cndmask_b32 v10, v10, v9, s[30:31]")
        e("s_and_b64 vcc, vcc, s[30:31]\ns_andn2_b64 s[32:33], s[32:33], s[30:31]\ns_or_b64 vcc, vcc, s[32:33]")
        e(f"v_lshl_add_u32 v10, v10, 1, v2\nv_mov_b32 v11, 0x40000000\nv_cndmask_b32 {v(3+t)}, v11, v10, vcc")
    for j in range(8):
        for t in range(5): e(f"buffer_load_ushort {v(16+8*t+j)}, {v(3+t)}, s[4:7], s25 offen")
        if j < 7: e("s_add_u32 s25, s25, s24")
    e(f"s_mul_i32 s26, s22, 15\ns_mul_i32 s27, s20, 5\ns_add_u32 s26, s26, s27\ns_mul_i32 s26, s26, 18\ns_add_u32 s26, s26, s23\ns_add_u32 s26, s26, {WQ//1024}")
    e(f"s_mul_i32 s27, s22, 18\ns_add_u32 s27, s27, s23\ns_mul_i32 s27, s27, 5\ns_add_u32 s27, s27, {WO//1024}")
    e("s_cmp_eq_u32 s20, 3\ns_cselect_b32 s26, s27, s26\ns_mov_b32 s28, 18432\ns_cselect_b32 s28, 1024, s28\ns_lshl_b32 s26, s26, 10")
    for t in range(5):
        for d in range(4): e(f"v_lshl_or_b32 {v(60+4*t+d)}, {v(16+8*t+2*d+1)}, 16, {v(16+8*t+2*d)}")
        e(f"buffer_store_dwordx4 {v(60+4*t,4)}, v8, s[12:15], s26 offen\ns_add_u32 s26, s26, s28")
    stamp_out(e, 0, 1, 12)
    e(f"L_end_{name}:\ns_endpgm"); out += e.fin()
    return name, (NG+NL+NR, 256, 1024), out, kd(name, 128, 128)

def k1():
    name = "k1_kernel"; out = ""
    e = K(); head(e, name, 256); stamp(e, 1, 0)
    srd(e, 12, P_WS, WSEND); wgmap(e, OPT['k1map'], 16, 17); waveid(e, 20)
    XR, MR, WR = 8, 56, 112
    e("v_lshlrev_b32 v2, 4, v0\nv_lshrrev_b32 v3, 4, v0\nv_lshlrev_b32 v3, 5, v3")
    e(f"s_lshl_b32 s22, s16, 2\ns_sub_u32 s21, s22, 1\ns_max_i32 s21, s21, 0\ns_mul_i32 s21, s21, 18432\ns_mul_i32 s22, s22, 18432")
    e(f"s_lshl_b32 s23, s20, 10\ns_add_u32 s23, s23, {XH}\ns_add_u32 s24, s21, s23\ns_add_u32 s25, s22, s23")
    e(f"s_and_b32 s26, s20, 1\ns_add_u32 s26, s26, 16\ns_lshr_b32 s27, s20, 1")
    e(f"s_lshl_b32 s28, s20, 7\ns_lshl_b32 s29, s26, 7\ns_waitcnt lgkmcnt(0)")
    def modld(k, so, off):
        for h in range(4): e(f"buffer_load_dwordx4 {v(MR+16*k+4*h,4)}, v3, s[12:15], {so} offen offset:{off+(h>>1)*2304+(h&1)*16}")
    v4 = 4
    e("v_add_u32 v4, 0x2000, v2")
    fr = []
    for k in range(2):
        modld(k, "s28", 1024*k)
        e("s_mov_b32 s30, s25")
        for rt in range(5):
            e(f"buffer_load_dwordx4 {v(XR+4*(5*k+rt),4)}, {'v4' if k else 'v2'}, s[12:15], {'s24' if rt==0 else 's30'} offen")
            if 0 < rt < 4: e("s_add_u32 s30, s30, 18432")
    modld(2, "s29", 0)
    e(f"s_lshl_b32 s30, s26, 10\ns_add_u32 s30, s30, {XH}\ns_add_u32 s31, s30, s21\ns_mul_i32 s32, s27, 18432\ns_add_u32 s30, s30, s22\ns_add_u32 s30, s30, s32")
    e(f"buffer_load_dwordx4 {v(XR+40,4)}, v2, s[12:15], s31 offen\nbuffer_load_dwordx4 {v(XR+44,4)}, v2, s[12:15], s30 offen")
    e("s_lshl_b32 s33, s20, 2\ns_lshr_b32 s34, 0x4432ed10, s33\ns_and_b32 s34, s34, 15\ns_add_u32 s33, s20, 5")
    e(f"s_mul_i32 s35, s17, 15\ns_add_u32 s36, s35, s33\ns_add_u32 s37, s35, s34\ns_mul_i32 s36, s36, 18432\ns_mul_i32 s37, s37, 18432\ns_add_u32 s36, s36, {WQ}\ns_add_u32 s37, s37, {WQ}")
    for ks in range(18):
        for t in range(2): e(f"buffer_load_dwordx4 {v(WR+8*ks+4*t,4)}, v2, s[12:15], s{36+t} offen offset:{1024*(ks&3)}")
        if ks & 3 == 3: e("s_add_u32 s36, s36, 4096\ns_add_u32 s37, s37, 4096")
    e("s_lshl_b32 s30, s20, 10\nv_add_u32 v5, s30, v2\ns_lshl_b32 s30, s26, 10\nv_add_u32 v6, s30, v2\ns_add_u32 s32, s32, 18432\nv_add_u32 v7, s32, v6\nv_add_u32 v104, 0xd800, v5")
    def modulate(x, m, addr, off):
        for d in range(4):
            e(f"v_fma_mix_f32 v105, {v(x+d)}, {v(m+8+2*d)}, {v(m+2*d)} op_sel_hi:[1,0,0]")
            e(f"v_fma_mix_f32 v106, {v(x+d)}, {v(m+9+2*d)}, {v(m+1+2*d)} op_sel:[1,0,0] op_sel_hi:[1,0,0]")
            e(f"v_cvt_pk_bf16_f32 {v(x+d)}, v105, v106")
        e(f"ds_write_b128 {addr}, {v(x,4)} offset:{off}")
    for k in range(2):
        for rt in range(5):
            off = rt*18432 + k*8192
            modulate(XR+4*(5*k+rt), MR+16*k, "v5" if rt < 3 else "v104", off if rt < 3 else off - 0xd800)
    modulate(XR+40, MR+32, "v6", 0); modulate(XR+44, MR+32, "v7", 0)
    stamp(e, 1, 1)
    e("v_lshrrev_b32 v105, 4, v0\nv_lshlrev_b32 v105, 2, v105\nv_and_b32 v106, 15, v0\nv_mul_u32_u24 v106, 80, v106")
    for t in range(2):
        e(f"s_mul_i32 s30, s{33+t}, 52\ns_lshr_b32 s30, s30, 8\ns_mul_i32 s31, s30, 5\ns_sub_u32 s31, s{33+t}, s31\ns_lshl_b32 s31, s31, 4\ns_mul_i32 s30, s30, 25600")
        e(f"v_add_u32 v107, s31, v105\nv_mul_u32_u24 v108, 13, v107\nv_lshrrev_b32 v108, 8, v108\nv_mul_u32_u24 v108, {6400-80}, v108\nv_lshl_add_u32 v107, v107, 2, v108\nv_add3_u32 {v(110+t)}, v107, v106, s30")
    e("v_add_u32 v4, 0xd800, v2\ns_waitcnt lgkmcnt(0)\ns_barrier")
    e("s_cmp_ge_u32 s20, 6\ns_cbranch_scc1 L_k1_c2\ns_and_b32 s30, s20, 2\ns_cmp_lg_u32 s30, 0\ns_cbranch_scc1 L_k1_c1")
    pre = e
    AC, AF = 8, 48
    import copy
    def gemm(e, rts1):
        def rd(ks):
            return [f"ds_read_b128 {v(AF+20*(ks&1)+4*rt,4)}, {'v2' if rt<3 else 'v4'} offset:{rt*18432+ks*1024-(0 if rt<3 else 0xd800)}" for rt in range(5)]
        for x in rd(0): e(x)
        for ks in range(18):
            mm = []
            for rt in range(5):
                for t in range(2):
                    if t == 1 and rt not in rts1: continue
                    c = v(AC+20*t+4*rt, 4)
                    mm.append(f"v_mfma_f32_16x16x32_bf16 {c}, {v(WR+8*ks+4*t,4)}, {v(AF+20*(ks&1)+4*rt,4)}, {c if ks else 0}")
            for x in interleave(mm, rd(ks+1) if ks < 17 else []): e(x)
        e("s_barrier")
        for rt in range(5):
            for t in range(2):
                if t == 1 and rt not in rts1: continue
                e(f"ds_write_b128 {v(110+t)}, {v(AC+20*t+4*rt,4)} offset:{1280*rt}")
        e("s_waitcnt lgkmcnt(0)")
    n0 = len(pre.L)
    def variant(label, rts1, tail):
        k = K(); k.L = list(pre.L); k(f"L_mark:");
        if label: k(label)
        gemm(k, rts1); k(tail)
        t = k.fin(); return t.split("L_mark:\n")
    p0, b0 = variant(None, (1,2,3,4), "s_branch L_k1_join")
    _, b1 = variant("L_k1_c1:", (0,1,2,3,4), "s_branch L_k1_join")
    _, b2 = variant("L_k1_c2:\ns_cmp_eq_u32 s20, 7\ns_cbranch_scc1 L_k1_c3", (1,2), "s_branch L_k1_join")
    _, b3 = variant("L_k1_c3:", (3,4), "s_nop 0")
    out += p0 + b0 + b1 + b2 + b3
    e = K(); e("L_k1_join:"); stamp(e, 1, 2)
    Q, KK, VV = 8, 32, 112
    e("s_and_b32 s30, s20, 3\ns_lshr_b32 s31, s20, 2\ns_lshl_b32 s31, s31, 5\nv_and_b32 v1, 31, v0\nv_add_u32 v1, s31, v1\nv_lshrrev_b32 v3, 5, v0")
    e(f"s_mul_i32 s32, s30, 6400\ns_add_u32 s32, s32, {16*80}\nv_mul_u32_u24 v4, 80, v1\nv_add_u32 v4, s32, v4\nv_mul_u32_u24 v5, 640, v3\nv_sub_u32 v5, v4, v5\nv_add_u32 v5, {25600-480}, v5")
    e("s_lshl_b32 s33, s16, 6\nv_add_u32 v6, s33, v1\nv_lshlrev_b32 v7, 3, v3\nv_sub_u32 v6, v6, v7")
    e("s_barrier")
    def row(dst, addr, off):
        for c in range(4): e(f"ds_read_b128 {v(dst+4*c,4)}, {addr} offset:{off+16*c}")
        e(f"ds_read_b64 {v(dst+16,2)}, {addr} offset:{off+64}")
    row(Q, "v4", 0)
    for j in range(4): row(KK+20*j, "v5", (3-j)*160)
    L = 200
    for j in range(4):
        row(VV+20*j, "v5", 25600+(3-j)*160)
        e(f"v_pk_mul_f32 {v(L+2*j,2)}, {v(Q,2)}, {v(KK+20*j,2)}")
        for c in range(1, 9): e(f"v_pk_fma_f32 {v(L+2*j,2)}, {v(Q+2*c,2)}, {v(KK+20*j+2*c,2)}, {v(L+2*j,2)}")
    SC = 0x3eae1e54
    import struct, math
    SC = struct.unpack("<I", struct.pack("<f", 18**-0.5*math.log2(math.e)))[0]
    NEG = struct.unpack("<I", struct.pack("<f", -1e9*math.log2(math.e)))[0]
    e(f"v_mov_b32 v210, {hex(NEG)}")
    for j in range(4):
        e(f"v_add_f32 {v(L+2*j)}, {v(L+2*j)}, {v(L+2*j+1)}\nv_cmp_le_i32 vcc, {2*j}, v6\nv_mul_f32 {v(L+2*j)}, {hex(SC)}, {v(L+2*j)}\nv_cndmask_b32 {v(L+2*j)}, v210, {v(L+2*j)}, vcc")
    e(f"v_max3_f32 v211, {v(L)}, {v(L+2)}, {v(L+4)}\nv_max_f32 v211, v211, {v(L+6)}\nv_mov_b32 v212, v211\nv_permlane32_swap_b32 v211, v212\nv_max_f32 v211, v211, v212")
    for j in range(4): e(f"v_sub_f32 {v(L+2*j)}, {v(L+2*j)}, v211")
    for j in range(4): e(f"v_exp_f32 {v(L+2*j)}, {v(L+2*j)}")
    e(f"v_add_f32 v211, {v(L)}, {v(L+2)}\nv_add_f32 v212, {v(L+4)}, {v(L+6)}\nv_add_f32 v211, v211, v212\nv_mov_b32 v212, v211\nv_permlane32_swap_b32 v211, v212\nv_add_f32 v211, v211, v212\nv_rcp_f32 v211, v211")
    for j in range(4): e(f"v_mul_f32 {v(L+2*j)}, {v(L+2*j)}, v211")
    O = 32
    for j in range(4):
        for c in range(9):
            if j == 0: e(f"v_pk_mul_f32 {v(O+2*c,2)}, {v(VV+2*c,2)}, {v(L,2)} op_sel_hi:[1,0]")
            else: e(f"v_pk_fma_f32 {v(O+2*c,2)}, {v(VV+20*j+2*c,2)}, {v(L+2*j,2)}, {v(O+2*c,2)} op_sel_hi:[1,0,1]")
    e(f"v_mov_b32 {v(O+18)}, 0\nv_mov_b32 {v(O+19)}, 0")
    OB = 76800
    e(f"s_mul_i32 s32, s30, 36\ns_add_u32 s32, s32, {OB}\nv_mul_u32_u24 v4, 144, v1\nv_mul_u32_u24 v5, 20, v3\nv_add3_u32 v4, v4, v5, s32")
    for i in range(10): e(f"v_permlane32_swap_b32 {v(O+i)}, {v(O+10+i)}")
    for i in range(10): e(f"v_add_f32 {v(O+i)}, {v(O+i)}, {v(O+10+i)}")
    for i in range(5): e(f"v_cvt_pk_bf16_f32 {v(O+20+i)}, {v(O+2*i)}, {v(O+2*i+1)}")
    for i in range(4): e(f"ds_write_b32 v4, {v(O+20+i)} offset:{4*i}")
    e(f"s_mov_b32 exec_hi, 0\nds_write_b32 v4, {v(O+24)} offset:16\ns_mov_b32 exec_hi, -1")
    def gaddr(g, la, ga):
        e(f"v_mul_u32_u24 v8, 3641, {g}\nv_lshrrev_b32 v8, 19, v8\nv_mul_u32_u24 v9, 144, v8\nv_sub_u32 v9, {g}, v9")
        e(f"v_mul_u32_u24 {ga}, 18432, v8\nv_lshl_add_u32 {ga}, v9, 4, {ga}\nv_and_b32 v10, 15, v9\nv_lshl_add_u32 v10, v8, 4, v10\nv_mul_u32_u24 v10, 144, v10\nv_and_b32 v9, 0xf0, v9\nv_add3_u32 {la}, v10, v9, s34")
    e(f"s_mov_b32 s34, {OB}\ns_lshl_b32 s32, s20, 6\nv_add_u32 v11, s32, v0\nv_add_u32 v12, 512, v0")
    gaddr("v11", "v13", "v14"); gaddr("v12", "v15", "v16")
    e(f"s_mul_i32 s32, s17, 2304\ns_add_u32 s32, s32, s22\ns_add_u32 s32, s32, {OO}")
    e("s_waitcnt lgkmcnt(0)\ns_barrier"); stamp(e, 1, 3)
    e("ds_read_b128 v[20:23], v13\nds_read_b128 v[24:27], v15\nbuffer_store_dwordx4 v[20:23], v14, s[12:15], s32 offen")
    e(f"s_cmp_lg_u32 s20, 0\ns_cbranch_scc1 L_end_{name}\nbuffer_store_dwordx4 v[24:27], v16, s[12:15], s32 offen")
    stamp_out(e, 1, 4, 12)
    e(f"L_end_{name}:\ns_endpgm"); out += e.fin()
    return name, (256, 512, 92160), out, kd(name, 256, 256)

def k2():
    name = "k2_kernel"
    e = K(); head(e, name, 256); stamp(e, 2, 0)
    srd(e, 12, P_WS, WSEND); srd(e, 4, P_X, ACT); wgmap(e, OPT['k2map'], 16, 17); waveid(e, 20)
    AF, XR, GA, AC, WF = 8, 80, 92, 112, 132
    e("v_lshlrev_b32 v2, 4, v0\nv_and_b32 v3, 15, v0\nv_lshrrev_b32 v4, 4, v0")
    e(f"s_lshl_b32 s21, s16, 2\ns_add_u32 s21, s21, s20\ns_mul_i32 s21, s21, 18432\ns_add_u32 s22, s21, {OO}")
    e(f"s_mul_i32 s23, s17, 92160\ns_lshl_b32 s24, s20, 11\ns_add_u32 s23, s23, s24\ns_add_u32 s23, s23, {WO}\ns_waitcnt lgkmcnt(0)")
    def apart(c):
        for ks in range(6*c, 6*c+6):
            e(f"buffer_load_dwordx4 {v(AF+4*ks,4)}, v2, s[12:15], s22 offen offset:{1024*(ks&3)}")
            if ks & 3 == 3: e("s_add_u32 s22, s22, 4096")
    for i in range(12):
        if i % 4 == 0: apart(i//4)
        if i == 11: e("s_cmp_eq_u32 s20, 0\ns_cselect_b32 s23, s23, 0x40000000")
        e(f"s_add_u32 m0, s24, {8192*i}")
        for h in range(2): e(f"buffer_load_dwordx4 v2, s[12:15], s23 offen offset:{1024*h} lds", tag=f"w{i//4}")
        if i < 11: e("s_add_u32 s23, s23, 8192")
    e(f"v_mul_u32_u24 v5, 1152, v3\nv_lshl_add_u32 v5, v4, 3, v5\ns_mul_i32 s25, s17, 144\ns_add_u32 s26, s21, s25\nv_lshlrev_b32 v6, 4, v4\ns_lshl_b32 s27, s25, 1\ns_add_u32 s27, s27, {2*2304}")
    for t in range(5): e(f"buffer_load_dwordx2 {v(XR+2*t,2)}, v5, s[4:7], s26 offen offset:{32*t}")
    for t in range(5): e(f"buffer_load_dwordx4 {v(GA+4*t,4)}, v6, s[12:15], s27 offen offset:{64*t}")
    e("v_add_u32 v1, 0xb400, v2")
    def rd(ks):
        r = []
        for t in range(5):
            off = (ks*5+t)*1024
            r.append(f"ds_read_b128 {v(WF+20*(ks&1)+4*t,4)}, {'v2' if ks<9 else 'v1'} offset:{off-(0 if ks<9 else 0xb400)}")
        return r
    e.waitvm("w0"); e("s_barrier"); stamp(e, 2, 1)
    for x in rd(0): e(x)
    for ks in range(18):
        if ks in (5, 11): e.waitvm(f"w{(ks+1)//6}"); e("s_barrier")
        mm = [f"v_mfma_f32_16x16x32_bf16 {v(AC+4*t,4)}, {v(WF+20*(ks&1)+4*t,4)}, {v(AF+4*ks,4)}, {v(AC+4*t,4) if ks else 0}" for t in range(5)]
        for x in interleave(mm, rd(ks+1) if ks < 17 else []): e(x)
    stamp(e, 2, 2)
    e(f"v_lshrrev_b32 v5, 1, v4\nv_lshlrev_b32 v5, 8, v5\nv_lshl_add_u32 v5, v3, 4, v5\nv_and_b32 v6, 1, v4\nv_lshl_add_u32 v5, v6, 3, v5\ns_mul_i32 s25, s17, 2304\ns_add_u32 s25, s25, s21\ns_add_u32 s25, s25, {X2}")
    for t in range(5):
        for d in range(2):
            e(f"v_lshlrev_b32 v8, 16, {v(XR+2*t+d)}\nv_and_b32 v9, 0xffff0000, {v(XR+2*t+d)}")
            e(f"v_fmac_f32 v8, {v(GA+4*t+2*d)}, {v(AC+4*t+2*d)}\nv_fmac_f32 v9, {v(GA+4*t+2*d+1)}, {v(AC+4*t+2*d+1)}\nv_cvt_pk_bf16_f32 {v(XR+2*t+d)}, v8, v9")
        if t == 4: e("s_mov_b32 exec_hi, 0")
        e(f"buffer_store_dwordx2 {v(XR+2*t,2)}, v5, s[12:15], s25 offen offset:{512*t}")
    stamp_out(e, 2, 3, 12)
    e(f"L_end_{name}:\ns_endpgm")
    return name, (256, 256, 98304), e.fin(), kd(name, 176, 176)

SLOT = 36864
def k3():
    name = "k3_kernel"
    e = K(); head(e, name, 256); stamp(e, 3, 0)
    srd(e, 12, P_WS, WSEND); srd(e, 4, P_W1, 576*9216); srd(e, 8, P_W2, 4608*1152); wgmap(e, OPT['k3map'], 16, 17); waveid(e, 20)
    HX, AV, AC, WF, TM = 16, 88, 120, 152, 176
    NW = 6; PF = 3
    def act(rt, ks): return a_(64*rt+4*ks, 4) if ks < 16 else v(AV+8*rt+4*(ks-16), 4)
    e("v_lshlrev_b32 v2, 4, v0\nv_and_b32 v3, 15, v0\nv_lshrrev_b32 v4, 4, v0")
    e(f"s_lshl_b32 s21, s16, 2\ns_add_u32 s21, s21, s20\ns_mul_i32 s21, s21, 18432\ns_add_u32 s22, s21, {X2}\ns_waitcnt lgkmcnt(0)")
    for ks in range(18):
        e(f"buffer_load_dwordx4 {v(HX+4*ks,4)}, v2, s[12:15], s22 offen offset:{1024*(ks&3)}")
        if ks & 3 == 3: e("s_add_u32 s22, s22, 4096")
    MS = 4*SLOT
    e(f"s_lshl_b32 s23, s20, 10\ns_add_u32 m0, s23, {MS}\ns_add_u32 s23, s23, {3*2304}")
    e("buffer_load_dwordx4 v2, s[12:15], s23 offen lds", tag="m")
    e(f"s_mov_b32 m0, {MS+4096}\ns_mov_b32 s23, {3*2304+4096}")
    e("buffer_load_dwordx4 v2, s[12:15], s23 offen lds", tag="m")
    e("v_lshrrev_b32 v5, 3, v0\ns_lshl_b32 s23, s20, 3\nv_add_u32 v5, s23, v5\nv_and_b32 v6, 1, v4\ns_and_b32 s23, s20, 1\ns_lshl_b32 s23, s23, 1\nv_or_b32 v6, s23, v6\nv_lshlrev_b32 v6, 1, v6\nv_and_b32 v7, 7, v0\nv_xor_b32 v6, v6, v7\nv_lshlrev_b32 v6, 4, v6")
    e(f"s_mul_i32 s23, s17, 1152\nv_mul_u32_u24 v8, 9216, v5\nv_add3_u32 v8, v8, v6, s23")
    e(f"s_mul_i32 s23, s17, {576*1152}\nv_mul_u32_u24 v9, 1152, v5\nv_add3_u32 v9, v9, v6, s23")
    for kh in range(2):
        for i in range(9):
            e(f"s_mov_b32 {s(32+9*kh+i)}, {(288*kh+32*i)*9216-1024*(i&3)}\ns_mov_b32 {s(50+9*kh+i)}, {(288*kh+32*i)*1152-1024*(i&3)}")
    e("s_mul_i32 s24, s20, 9216")
    def dma(g):
        gm, j, kh = g//18, (g % 18)//2, g & 1; r = []
        for i in range(9):
            t = ""
            if i & 3 == 0: t = f"s_add_u32 m0, s24, {(g&3)*SLOT+1024*i}\n"
            t += f"buffer_load_dwordx4 {'v9' if gm else 'v8'}, {'s[8:11]' if gm else 's[4:7]'}, {s(32+18*gm+9*kh+i)} offen offset:{1024*(i&3)} lds"
            if i == 8 and kh == 1: t += f"\nv_add_u32 {'v9' if gm else 'v8'}, 128, {'v9' if gm else 'v8'}"
            r.append((t, f"g{g}"))
        return r
    for g in (0, 1):
        for t, tg in dma(g): e(t, tag=tg)
    e("v_lshrrev_b32 v5, 2, v3\nv_and_b32 v6, 3, v3\nv_lshrrev_b32 v7, 1, v5\nv_and_b32 v10, 1, v4\nv_lshl_or_b32 v7, v10, 1, v7\nv_xor_b32 v7, s20, v7\nv_lshlrev_b32 v7, 5, v7\nv_lshl_add_u32 v7, v6, 3, v7\nv_lshl_add_u32 v7, v5, 7, v7\nv_mul_u32_u24 v10, 9216, v4\nv_add_u32 v10, v10, v7")
    e(f"v_add_u32 v11, {2*SLOT}, v10")
    e(f"s_mov_b32 s25, 0x3f803f80\nv_mov_b32 {v(TM)}, 0\nv_mov_b32 {v(TM+1)}, 0\nv_mov_b32 {v(TM+2)}, 0\nv_mov_b32 {v(TM+3)}, 0")
    for i in range(72):
        e(f"v_dot2c_f32_bf16 {v(TM+(i&1))}, s25, {v(HX+i)}\nv_dot2c_f32_bf16 {v(TM+2+(i&1))}, {v(HX+i)}, {v(HX+i)}")
    e(f"v_add_f32 {v(TM)}, {v(TM)}, {v(TM+1)}\nv_add_f32 {v(TM+2)}, {v(TM+2)}, {v(TM+3)}")
    for sw in ("16", "32"):
        e(f"v_mov_b32 {v(TM+1)}, {v(TM)}\nv_mov_b32 {v(TM+3)}, {v(TM+2)}\nv_permlane{sw}_swap_b32 {v(TM)}, {v(TM+1)}\nv_permlane{sw}_swap_b32 {v(TM+2)}, {v(TM+3)}")
        e(f"v_add_f32 {v(TM)}, {v(TM)}, {v(TM+1)}\nv_add_f32 {v(TM+2)}, {v(TM+2)}, {v(TM+3)}")
    e(f"v_mul_f32 {v(TM)}, 0xbae38e39, {v(TM)}\nv_mul_f32 {v(TM+2)}, 0x3ae38e39, {v(TM+2)}\nv_fma_f32 {v(TM+2)}, -{v(TM)}, {v(TM)}, {v(TM+2)}\nv_max_f32 {v(TM+2)}, 0, {v(TM+2)}\nv_add_f32 {v(TM+2)}, 0x3727c5ac, {v(TM+2)}")
    e(f"v_rsq_f32 {v(TM+2)}, {v(TM+2)}\nv_mul_f32 {v(TM)}, {v(TM)}, {v(TM+2)}")
    e(f"v_lshlrev_b32 v5, 5, v4\nv_add_u32 v5, {MS}, v5\ns_mul_i32 s23, s20, 18432\ns_add_u32 s23, s23, {2*SLOT}\nv_add_u32 v6, s23, v2")
    e.waitvm("m"); e("s_barrier"); stamp(e, 3, 1)
    MM = TM+8
    def mrd(ks):
        for h in range(4): e(f"ds_read_b128 {v(MM+16*(ks&1)+4*h,4)}, v5 offset:{128*ks+(h>>1)*2304+(h&1)*16}")
    mrd(0)
    for ks in range(18):
        if ks < 17: mrd(ks+1)
        m = MM+16*(ks&1)
        for d in range(4):
            x = HX+4*ks+d; t = TM+4+2*(d&1)
            e(f"v_lshlrev_b32 {v(t)}, 16, {v(x)}\nv_and_b32 {v(t+1)}, 0xffff0000, {v(x)}")
            e(f"v_pk_fma_f32 {v(t,2)}, {v(t,2)}, {v(TM+2,2)}, {v(TM,2)} op_sel_hi:[1,0,0]\nv_pk_fma_f32 {v(t,2)}, {v(t,2)}, {v(m+8+2*d,2)}, {v(m+2*d,2)}")
            e(f"v_cvt_pk_bf16_f32 {v(x)}, {v(t)}, {v(t+1)}")
        e(f"ds_write_b128 v6, {v(HX+4*ks,4)} offset:{1024*ks}")
    e("v_and_b32 v5, 1, v4\nv_lshrrev_b32 v6, 1, v4\ns_lshr_b32 s23, s20, 1\ns_lshl_b32 s23, s23, 10\ns_and_b32 s26, s20, 1\ns_lshl_b32 s26, s26, 9\ns_add_u32 s23, s23, s26")
    e("v_mul_u32_u24 v12, 18432, v5\nv_lshl_add_u32 v12, v6, 8, v12\nv_lshl_add_u32 v12, v3, 4, v12\nv_add_u32 v12, s23, v12")
    e(f"v_lshrrev_b32 v7, 3, v3\nv_lshl_add_u32 v7, v5, 1, v7\nv_mul_u32_u24 v13, {8*9216}, v7\nv_lshl_add_u32 v13, v6, 7, v13\nv_and_b32 v7, 7, v3\nv_lshl_add_u32 v13, v7, 4, v13")
    e(f"s_mul_i32 s26, s16, {64*9216}\ns_mul_i32 s27, s17, 9216\ns_add_u32 s26, s26, s27\ns_lshl_b32 s27, s20, 8\ns_add_u32 s26, s26, s27\ns_add_u32 s26, s26, {PART}\ns_add_u32 s27, s26, {4*8*9216}")
    e(f"v_add_u32 v14, {SLOT}, v2\nv_add_u32 v15, {3*SLOT}, v2\nv_add_u32 v1, {2*SLOT}, v2")
    def actrd(ks, lo, hi): return [f"ds_read_b128 {act(rt,ks)}, {lo if rt<2 else hi} offset:{(rt&1)*18432+1024*ks}" for rt in range(4)]
    def wrd(T):
        g, k = T//9, T % 9; sl_ = g & 3; r = WF+4*(T % NW)
        return [f"ds_read_b64_tr_b16 {v(r+2*h,2)}, {'v10' if sl_<2 else 'v11'} offset:{(sl_&1)*SLOT+1024*k+512*h}" for h in range(2)]
    def epi(gm, j):
        ac = AC+16*((9*gm+j)&1); d = HX+8*j if gm == 0 else HX+8*(j&1); r = []
        for q in range(8): r.append(f"v_cvt_pk_bf16_f32 {v(d+q)}, {v(ac+2*q)}, {v(ac+2*q+1)}")
        if gm == 0:
            for q in range(8): r.append(f"v_pk_max_i16 {v(d+q)}, {v(d+q)}, 0")
        for p in range(2):
            for q in range(2): r.append(f"v_permlane16_swap_b32 {v(d+4*p+q)}, {v(d+4*p+2+q)}")
        if gm == 1:
            for p in range(2): r.append(f"buffer_store_dwordx4 {v(d+4*p,4)}, v13, s[12:15], s{26+p} offen offset:{1024*(j&3)} {OPT['pst']}")
            if j & 3 == 3: r.append("v_add_u32 v13, 4096, v13")
        return r
    for gm in range(2):
        G0 = 18*gm; T0 = 9*G0
        lo, hi = ("v1", "v15") if gm == 0 else ("v2", "v14")
        e.waitvm(f"g{G0}"); e("s_waitcnt lgkmcnt(0)\ns_barrier"); stamp(e, 3, 2+2*gm)
        pend_act = [x for ks in range(18) for x in actrd(ks, lo, hi)]
        for x in pend_act[:8]: e(x)
        pend_act = pend_act[8:]
        for T in range(T0, T0+PF):
            for x in wrd(T): e(x)
        pend_dma = []; pend_epi = []
        for T in range(T0, T0+162):
            g, k = T//9, T % 9; j = (g-G0)//2; ks = 9*(g & 1)+k
            ac = AC+16*((9*gm+j)&1); w = v(WF+4*(T % NW), 4)
            mm = [f"v_mfma_f32_16x16x32_bf16 {v(ac+4*rt,4)}, {w}, {act(rt,ks)}, {v(ac+4*rt,4) if ks else 0}" for rt in range(4)]
            Tn = T+PF; rds = wrd(Tn) if Tn < T0+162 else []
            if ks == 1 and j > 0: pend_epi = epi(gm, j-1)
            bar = Tn % 9 == 0 and Tn < T0+162
            fill = []
            if pend_act:
                n = 12 if T-T0 < 5 else 4
                fill += [(x, None) for x in pend_act[:n]]; pend_act = pend_act[n:]
            nd = 2 if len(pend_dma) > 9-k-(0) else 1
            fill += pend_dma[:nd]; pend_dma = pend_dma[nd:]
            ne = 2 if not bar else 0
            fill += [(x, None) for x in pend_epi[:ne]]; pend_epi = pend_epi[ne:]
            if bar:
                gn = Tn//9
                e(mm[0]); e(mm[1])
                for t, tg in fill: e(t, tag=tg)
                assert not any(tg == f"g{gn}" for _, tg in pend_dma)
                e(mm[2]); e.waitvm(f"g{gn}"); e("s_waitcnt lgkmcnt(0)\ns_barrier")
                for x in rds: e(x)
                e(mm[3])
                new = [gn+3] if gn > G0+1 else [gn+1, gn+2, gn+3]
                if gm == 0: new = [x for x in new if x < 20]
                for x in new:
                    if x < 36: pend_dma += dma(x)
            else:
                fill = [(x, None) for x in rds] + fill
                per = -(-len(fill)//4); i = 0
                for m_ in mm:
                    e(m_)
                    for t, tg in fill[i:i+per]: e(t, tag=tg)
                    i += per
        assert not pend_act and not pend_epi
        for t, tg in pend_dma: e(t, tag=tg)
        stamp(e, 3, 3+2*gm)
        if gm == 0:
            e("s_barrier")
            for j in range(8):
                for p in range(2): e(f"ds_write_b128 v12, {v(HX+8*j+4*p,4)} offset:{SLOT*p+2048*j}")
            for x in epi(0, 8): e(x)
            for p in range(2): e(f"ds_write_b128 v12, {v(HX+64+4*p,4)} offset:{SLOT*p+2048*8}")
        else:
            for x in epi(1, 8): e(x)
    stamp_out(e, 3, 6, 12)
    e(f"L_end_{name}:\ns_endpgm")
    return name, (256, 256, 4*SLOT+5120), e.fin(), kd(name, 512, 256)

def k4():
    name = "k4_kernel"
    e = K(); head(e, name, 256); stamp(e, 4, 0)
    srd(e, 12, P_WS, WSEND); srd(e, 4, P_OUT, ACT); waveid(e, 20)
    e(f"v_lshlrev_b32 v2, 4, v0\nv_lshrrev_b32 v3, 3, v0\nv_and_b32 v4, 7, v0\ns_mul_i32 s21, s2, {8*9216}\ns_lshl_b32 s22, s20, 10\ns_add_u32 s21, s21, s22\ns_add_u32 s21, s21, {PART}\ns_waitcnt lgkmcnt(0)")
    for i in range(8):
        e(f"buffer_load_dwordx4 {v(8+4*i,4)}, v2, s[12:15], s21 offen")
        if i < 7: e("s_add_u32 s21, s21, 9216")
    e(f"s_lshr_b32 s23, s2, 1\ns_mul_i32 s23, s23, 18432\ns_and_b32 s24, s2, 1\ns_lshl_b32 s24, s24, 7\ns_add_u32 s23, s23, s24\ns_lshl_b32 s24, s20, 11\ns_add_u32 s23, s23, s24\ns_add_u32 s23, s23, {X2}")
    e("v_lshlrev_b32 v5, 8, v3\nv_lshl_add_u32 v5, v4, 4, v5\nbuffer_load_dwordx4 v[40:43], v5, s[12:15], s23 offen")
    e(f"v_lshlrev_b32 v6, 5, v3\ns_lshl_b32 s24, s20, 8\ns_add_u32 s24, s24, {5*2304}\nbuffer_load_dwordx4 v[44:47], v6, s[12:15], s24 offen\nbuffer_load_dwordx4 v[48:51], v6, s[12:15], s24 offen offset:16")
    e("v_mul_u32_u24 v7, 1152, v4\nv_lshl_add_u32 v7, v3, 4, v7\ns_mul_i32 s25, s2, 9216\ns_lshl_b32 s26, s20, 7\ns_add_u32 s25, s25, s26")
    for i in range(8):
        for d in range(4):
            x = v(8+4*i+d)
            if i == 0: e(f"v_lshlrev_b32 {v(52+2*d)}, 16, {x}\nv_and_b32 {v(53+2*d)}, 0xffff0000, {x}")
            else: e(f"v_lshlrev_b32 v60, 16, {x}\nv_and_b32 v61, 0xffff0000, {x}\nv_pk_add_f32 {v(52+2*d,2)}, {v(52+2*d,2)}, v[60:61]")
    for d in range(4):
        e(f"v_lshlrev_b32 v60, 16, {v(40+d)}\nv_and_b32 v61, 0xffff0000, {v(40+d)}\nv_pk_fma_f32 v[60:61], {v(52+2*d,2)}, {v(44+2*d,2)}, v[60:61]\nv_cvt_pk_bf16_f32 {v(40+d)}, v60, v61")
    e("buffer_store_dwordx4 v[40:43], v7, s[4:7], s25 offen")
    stamp_out(e, 4, 1, 12)
    e(f"L_end_{name}:\ns_endpgm")
    return name, (256, 576, 0), e.fin(), kd(name, 64, 64)

def build(path, ks=None, **opt):
    OPT.update(opt)
    ks = [f() for f in (ks or (k0, k1, k2, k3, k4))]
    hdr = "; generated by dev/gen.py\n" + "".join(f"; @launch kernel={n} grid=({g[0]},1,1) block=({g[1]},1,1) lds={g[2]}\n" for n, g, _, _ in ks)
    seen = set(); text = ""; kds = ""
    for n, g, t, d in ks:
        if n not in seen: seen.add(n); text += t; kds += d
    open(path, "w").write(hdr + '.amdgcn_target "amdgcn-amd-amdhsa--gfx950"\n.text\n' + text + '.section .rodata,"a"\n' + kds)
if __name__ == "__main__":
    build(f"cdna_kernels/{NAME}.s")
```
